```python
import torch

def _softmax(x, axis=-1):
    return torch.softmax(x, dim=axis)
def _gelu(x):
    return torch.nn.functional.gelu(x, approximate="tanh")
def _silu(x):
    return torch.nn.functional.silu(x)
def _sigmoid(x):
    return torch.sigmoid(x)
def _layernorm(x, axis=-1, eps=1e-5):
    m = x.mean(dim=axis, keepdim=True)
    v = x.var(dim=axis, keepdim=True, unbiased=False)
    return (x - m) / torch.sqrt(v + eps)
def _scatter_add(tgt, idx, src, axis=0):
    return tgt.clone().index_add_(axis, idx, src)
def _segment_sum(src, seg, n):
    out = torch.zeros((n,) + src.shape[1:], dtype=src.dtype)
    return out.index_add_(0, seg, src)
def _pad(x, pw):
    flat = tuple(v for pair in reversed(pw) for v in pair)
    return torch.nn.functional.pad(x, flat)

kernel_name = 'gated_mix__gqa_block_cached__gqa_block_cached__decode'

def setup_inputs():

    _w = (lambda a: (lambda t: t.to(torch.bfloat16) if t.is_floating_point() else t)(torch.as_tensor(a)))
    def _A_setup():
        B, Sq, D = 2, 1, 576
        Hq, Hkv, Sk, Dh = 32, 16, 16384, 128
        assert Hq % Hkv == 0, (Hq, Hkv)
        return {
            "x": _w((lambda *s: torch.randn(*s, dtype=torch.bfloat16) * 0.05)(B, Sq, D)),
            "k_cache": _w((lambda *s: torch.randn(*s, dtype=torch.bfloat16) * 6.4)(B, Hkv, Sk, Dh)),
            "v_cache": _w((lambda *s: torch.randn(*s, dtype=torch.bfloat16) * 0.05)(B, Hkv, Sk, Dh)),
            "wq": _w((lambda *s: torch.randn(*s, dtype=torch.bfloat16) * 6.4)(D, Hq * Dh) * (D ** -0.5)),
            "wo": _w((lambda *s: torch.randn(*s, dtype=torch.bfloat16) * 0.05)(Hq * Dh, D) * ((Hq * Dh) ** -0.5)),
        }
    _A_in = _A_setup()

    def _B_setup():
        B, Sq, D = 2, 1, 576
        Hq, Hkv, Sk, Dh = 32, 16, 16384, 128
        assert Hq % Hkv == 0, (Hq, Hkv)
        return {
            "x": _w((lambda *s: torch.randn(*s, dtype=torch.bfloat16) * 0.05)(B, Sq, D)),
            "k_cache": _w((lambda *s: torch.randn(*s, dtype=torch.bfloat16) * 6.4)(B, Hkv, Sk, Dh)),
            "v_cache": _w((lambda *s: torch.randn(*s, dtype=torch.bfloat16) * 0.05)(B, Hkv, Sk, Dh)),
            "wq": _w((lambda *s: torch.randn(*s, dtype=torch.bfloat16) * 6.4)(D, Hq * Dh) * (D ** -0.5)),
            "wo": _w((lambda *s: torch.randn(*s, dtype=torch.bfloat16) * 0.05)(Hq * Dh, D) * ((Hq * Dh) ** -0.5)),
        }
    _B_in = _B_setup()

    return {
        "A_x": _A_in["x"],
        "A_k_cache": _A_in["k_cache"],
        "A_v_cache": _A_in["v_cache"],
        "A_wq": _A_in["wq"],
        "A_wo": _A_in["wo"],
        "B_x": _B_in["x"],
        "B_k_cache": _B_in["k_cache"],
        "B_v_cache": _B_in["v_cache"],
        "B_wq": _B_in["wq"],
        "B_wo": _B_in["wo"],
        "gate_w": _w((lambda *s: torch.randn(*s, dtype=torch.bfloat16) * 0.05)(576) * 16.0),
    }

def reference(A_x, A_k_cache, A_v_cache, A_wq, A_wo, B_x, B_k_cache, B_v_cache, B_wq, B_wo, gate_w):
    def _A_ref(x, k_cache, v_cache, wq, wo):
        B, Sq, D = x.shape
        Hq, Dh = 32, 128
        Hkv = k_cache.shape[1]
        rep = Hq // Hkv
        q = (lambda x, *d: x.permute(*d))((x @ wq).reshape(B, Sq, Hq, Dh), 0, 2, 1, 3)
        k = (lambda x, n, axis: torch.repeat_interleave(x, n, dim=axis))(k_cache, rep, axis=1)
        v = (lambda x, n, axis: torch.repeat_interleave(x, n, dim=axis))(v_cache, rep, axis=1)
        scores = torch.einsum("bhqd,bhkd->bhqk", q, k) * (Dh ** -0.5)
        p = _softmax(scores, axis=-1)
        o = torch.einsum("bhqk,bhkd->bhqd", p, v)
        return (lambda x, *d: x.permute(*d))(o, 0, 2, 1, 3).reshape(B, Sq, Hq * Dh) @ wo

    def _B_ref(x, k_cache, v_cache, wq, wo):
        B, Sq, D = x.shape
        Hq, Dh = 32, 128
        Hkv = k_cache.shape[1]
        rep = Hq // Hkv
        q = (lambda x, *d: x.permute(*d))((x @ wq).reshape(B, Sq, Hq, Dh), 0, 2, 1, 3)
        k = (lambda x, n, axis: torch.repeat_interleave(x, n, dim=axis))(k_cache, rep, axis=1)
        v = (lambda x, n, axis: torch.repeat_interleave(x, n, dim=axis))(v_cache, rep, axis=1)
        scores = torch.einsum("bhqd,bhkd->bhqk", q, k) * (Dh ** -0.5)
        p = _softmax(scores, axis=-1)
        o = torch.einsum("bhqk,bhkd->bhqd", p, v)
        return (lambda x, *d: x.permute(*d))(o, 0, 2, 1, 3).reshape(B, Sq, Hq * Dh) @ wo

    x = A_x
    g = _sigmoid((x * gate_w).sum(-1, keepdims=True))
    a = _A_ref(x, A_k_cache, A_v_cache, A_wq, A_wo)
    b = _B_ref(x, B_k_cache, B_v_cache, B_wq, B_wo)
    return g * a + (1 - g) * b
```

```python
import re

TRANS = ("v_exp_f32", "v_log_f32", "v_rcp_f32", "v_rsq_f32", "v_sqrt_f32", "v_sin_f32", "v_cos_f32")

def regs_of(tok):
    tok = tok.strip()
    neg = tok.lstrip("-")
    m = re.fullmatch(r"abs\((.*)\)", neg)
    if m:
        neg = m.group(1)
    m = re.fullmatch(r"([vs])(\d+)", neg)
    if m:
        return {(m.group(1), int(m.group(2)))}
    m = re.fullmatch(r"([vs])\[(\d+):(\d+)\]", neg)
    if m:
        return {(m.group(1), i) for i in range(int(m.group(2)), int(m.group(3)) + 1)}
    if neg in ("vcc", "vcc_lo", "vcc_hi"):
        return {("s", "vcc")}
    if neg == "m0":
        return {("s", "m0")}
    if neg in ("exec", "exec_lo", "exec_hi"):
        return {("s", "exec")}
    return set()

class Ins:
    def __init__(self, text):
        self.text = text
        t = text.split(";")[0].strip()
        parts = t.split(None, 1)
        self.op = parts[0]
        rest = parts[1] if len(parts) > 1 else ""
        ops = [o.strip() for o in re.split(r",(?![^\[]*\])", rest)] if rest else []
        if ops:
            last = ops[-1].split()
            self.mods = " ".join(last[1:])
            ops[-1] = last[0]
        else:
            self.mods = ""
        self.ops = ops
        op = self.op
        self.mfma = op.startswith("v_mfma")
        self.valu = op.startswith("v_") and not self.mfma
        self.vmem = op.startswith(("buffer_", "global_"))
        self.ds = op.startswith("ds_")
        self.salu = op.startswith("s_")
        self.trans = op.replace("_e32", "").replace("_e64", "") in TRANS
        self.dpp = any(k in self.mods for k in ("quad_perm", "row_", "wave_"))
        self.perml = op.startswith("v_permlane")
        self.rdlane = op.startswith(("v_readlane", "v_readfirstlane"))
        self.ldsdma = self.vmem and re.search(r"\blds\b", self.mods) is not None
        R = [regs_of(o) for o in ops]
        self.w, self.r = set(), set()
        self.srcc = set(); self.srcab = set(); self.stdata = set()
        if self.mfma:
            self.w = R[0]; self.srcab = R[1] | R[2]; self.srcc = R[3]; self.r = self.srcab | self.srcc
        elif self.valu:
            self.w = set(R[0]); src = R[1:]
            if op.startswith(("v_add_co", "v_addc_co", "v_sub_co")):
                self.w |= R[1]; src = R[2:]
            for s in src:
                self.r |= s
            if self.perml:
                self.w |= R[1]; self.r |= R[0]
            if op.startswith(("v_fmac", "v_dot2c")) or self.dpp:
                self.r |= R[0]
        elif self.vmem and op == "buffer_wbl2":
            pass
        elif self.vmem:
            if self.ldsdma:
                for s in R: self.r |= s
            elif "load" in op:
                self.w = R[0]
                for s in R[1:]: self.r |= s
            else:
                for s in R: self.r |= s
                if "atomic" in op and "sc0" in self.mods:
                    self.w = R[0]
                if op.endswith(("x3", "x4")):
                    self.stdata = R[0]
        elif self.ds:
            if "read" in op or "rtn" in op or "permute" in op or "swizzle" in op:
                self.w = R[0]
                for s in R[1:]: self.r |= s
            else:
                for s in R: self.r |= s
        elif self.salu:
            if ops and not op.startswith(("s_cmp", "s_cbranch", "s_branch", "s_waitcnt", "s_nop", "s_barrier", "s_setprio", "s_sleep", "s_endpgm", "s_bitcmp")):
                self.w = R[0]
                for s in R[1:]: self.r |= s
            else:
                for s in R: self.r |= s
        self.states = int(ops[0]) + 1 if op == "s_nop" else 1

def need(p, c):
    n = 0
    pv = {x for x in p.w if x[0] == "v"}
    ps = {x for x in p.w if x[0] == "s"}
    if p.valu:
        if c.mfma and pv & c.r: n = max(n, 2)
        if c.valu and p.trans and not c.trans and pv & c.r: n = max(n, 1)
        if c.valu and (c.dpp or c.perml) and pv & c.r: n = max(n, 2)
        if c.rdlane and pv & c.r: n = max(n, 1)
        if c.valu and ps & c.r: n = max(n, 4 if c.rdlane else 2)
        if c.vmem and ps & c.r: n = max(n, 5)
    if p.mfma:
        if c.mfma:
            if pv & c.srcab: n = max(n, 8)
            if pv & c.srcc and pv != c.srcc: n = max(n, 6)
            if pv & c.w and pv != c.srcc: n = max(n, 6)
        elif c.valu or c.vmem or c.ds:
            if pv & (c.r | c.w): n = max(n, 8)
        if c.valu and p.srcc & c.w: n = max(n, 3)
    if p.salu and ("s", "m0") in p.w and c.ldsdma: n = max(n, 1)
    if p.stdata and p.stdata & c.w: n = max(n, 2)
    return n

class Asm:
    def __init__(self):
        self.lines = []
        self.hist = []
    def raw(self, s):
        self.lines.append(s)
    def label(self, name):
        self.lines.append(name + ":")
    def flush(self):
        self.hist = []
    def __call__(self, text):
        for t in text.split("\n"):
            t = t.strip()
            if not t:
                continue
            if t.startswith(";"):
                self.lines.append("    " + t); continue
            if t.endswith(":"):
                self.lines.append(t); continue
            c = Ins(t)
            dist, pad = 0, 0
            for p in reversed(self.hist):
                pad = max(pad, need(p, c) - dist)
                dist += p.states
                if dist >= 12:
                    break
            if pad > 0:
                nop = Ins(f"s_nop {pad-1}")
                self.lines.append("    " + nop.text); self.hist.append(nop)
            self.lines.append("    " + t); self.hist.append(c)
            if c.op in ("s_branch", "s_endpgm"):
                self.hist = []
            self.hist = self.hist[-24:]
    def text(self):
        return "\n".join(self.lines) + "\n"


def insert_pads(lines, first_label, last_target, entry):
    import subprocess, os
    def is_ins(l):
        return l.startswith("    ") and not l.strip().startswith(";")
    probe = [l for l in lines]
    i0 = probe.index(entry + ":")
    probe.insert(i0 + 1, first_label + ":")
    open("_p%d.s" % os.getpid(), "w").write("\n".join(probe) + "\n")
    subprocess.run(["clang", "-x", "assembler", "-target", "amdgcn-amd-amdhsa", "-mcpu=gfx950",
                    "-c", "_p%d.s" % os.getpid(), "-o", "_p%d.o" % os.getpid()], check=True)
    dis = subprocess.run(["llvm-objdump", "-d", "--mcpu=gfx950", "_p%d.o" % os.getpid()], capture_output=True, text=True).stdout
    sizes = [4 * len(m.group(1).split()) for m in re.finditer(r"//\s*[0-9A-F]+:((?: [0-9A-F]{8})+)", dis)]
    out, addr, k, on, n, done = [], 0, 0, False, 0, -1
    for l in lines:
        t = l.strip()
        if t == ";PADON":
            on = True; continue
        if t == ";PADOFF":
            on = False; continue
        if is_ins(l):
            if on and addr // 256 > done:
                out.append(f"{first_label if n == 0 else 'L_pad%d' % n}:")
                out.append(f"    s_cbranch_execz L_pad{n+1}")
                done = addr // 256
                addr += 4; n += 1
            addr += sizes[k]; k += 1
        out.append(l)
    out = [l.replace(f"L_pad{n}", last_target) if l == f"    s_cbranch_execz L_pad{n}" else l for l in out]
    return out, addr, n
```

```python
import sys
from asmlib import Ins, need
lines = open(sys.argv[1]).read().split("\n")
ins, labels = [], {}
for l in lines:
    t = l.split(";")[0].strip()
    if not t or t.startswith("."):
        continue
    if t.endswith(":"):
        labels[t[:-1]] = len(ins); continue
    ins.append(Ins(t))
def succ(i):
    x = ins[i]
    if x.op == "s_endpgm": return []
    if x.op == "s_branch": return [labels[x.ops[0]]]
    if x.op.startswith("s_cbranch"):
        if x.op == "s_cbranch_execz" and (x.ops[0].startswith("L_pad") or x.ops[0] == "L_exit"): return [i + 1]
        return [i + 1, labels[x.ops[0]]]
    return [i + 1]
bad = 0
for i, p in enumerate(ins):
    if not (p.valu or p.mfma or p.stdata or (p.salu and ("s", "m0") in p.w)): continue
    st, seen = [(j, 0) for j in succ(i)], {}
    while st:
        j, d = st.pop()
        if j >= len(ins) or d >= 12 or seen.get(j, 99) <= d: continue
        seen[j] = d
        n = need(p, ins[j])
        if n > d:
            bad += 1; print("HAZARD need", n, "have", d, "|", p.text, "->", ins[j].text)
        for k in succ(j): st.append((k, d + ins[j].states))
print(len(ins), "instructions,", bad, "hazards")
```
